```python
import torch

def _softmax(x, axis=-1):
    return torch.softmax(x, dim=axis)
def _gelu(x):
    return torch.nn.functional.gelu(x, approximate="tanh")
def _silu(x):
    return torch.nn.functional.silu(x)
def _sigmoid(x):
    return torch.sigmoid(x)
def _layernorm(x, axis=-1, eps=1e-5):
    m = x.mean(dim=axis, keepdim=True)
    v = x.var(dim=axis, keepdim=True, unbiased=False)
    return (x - m) / torch.sqrt(v + eps)
def _scatter_add(tgt, idx, src, axis=0):
    return tgt.clone().index_add_(axis, idx, src)
def _segment_sum(src, seg, n):
    out = torch.zeros((n,) + src.shape[1:], dtype=src.dtype)
    return out.index_add_(0, seg, src)
def _pad(x, pw):
    flat = tuple(v for pair in reversed(pw) for v in pair)
    return torch.nn.functional.pad(x, flat)

kernel_name = 'parallel_sum__sliding_block__dense_activation_gelu__prompt'

def setup_inputs():

    _w = (lambda a: (lambda t: t.to(torch.bfloat16) if t.is_floating_point() else t)(torch.as_tensor(a)))
    def _A_setup():
        B, S, D = 1, 2048, 1024
        return {
            "x": _w((lambda *s: torch.randn(*s, dtype=torch.bfloat16) * 0.05)(B, S, D)),
            "wqkv": _w((lambda *s: torch.randn(*s, dtype=torch.bfloat16) * 0.05)(D, 3 * D)),
            "wo": _w((lambda *s: torch.randn(*s, dtype=torch.bfloat16) * 0.05)(D, D)),
        }
    _A_in = _A_setup()

    def _B_setup():
        B, S, D, F = 1, 2048, 1024, 3584
        return {
            "x": _w((lambda *s: torch.randn(*s, dtype=torch.bfloat16) * 0.05)(B, S, D)),
            "w1": _w((lambda *s: torch.randn(*s, dtype=torch.bfloat16) * 3.2)(D, F) * (D ** -0.5)),
            "b1": _w((lambda *s: torch.randn(*s, dtype=torch.bfloat16) * 3.2)(F) * 0.01),
            "w2": _w((lambda *s: torch.randn(*s, dtype=torch.bfloat16) * 0.4)(F, D) * (F ** -0.5)),
            "b2": _w((lambda *s: torch.randn(*s, dtype=torch.bfloat16) * 0.4)(D) * 0.01),
        }
    _B_in = _B_setup()

    return {
        "A_x": _A_in["x"],
        "A_wqkv": _A_in["wqkv"],
        "A_wo": _A_in["wo"],
        "B_x": _B_in["x"],
        "B_w1": _B_in["w1"],
        "B_b1": _B_in["b1"],
        "B_w2": _B_in["w2"],
        "B_b2": _B_in["b2"],
    }

def reference(A_x, A_wqkv, A_wo, B_x, B_w1, B_b1, B_w2, B_b2):
    def _A_ref(x, wqkv, wo):
        B, S, D = x.shape
        H = 32; Dh = D // H; W = 256
        qkv = (lambda x, *d: x.permute(*d))((x @ wqkv).reshape(B, S, 3, H, Dh), 2, 0, 3, 1, 4)
        q, k, v = qkv[0], qkv[1], qkv[2]
        scores = torch.einsum("bhqd,bhkd->bhqk", q, k) * (Dh ** -0.5)
        idx = torch.arange(S)
        mask = (idx[:, None] - idx[None, :] >= 0) & (idx[:, None] - idx[None, :] < W)
        scores = torch.where(mask[None, None], scores, -1e9)
        p = _softmax(scores, axis=-1)
        o = torch.einsum("bhqk,bhkd->bhqd", p, v)
        return (lambda x, *d: x.permute(*d))(o, 0, 2, 1, 3).reshape(B, S, D) @ wo

    def _B_ref(x, w1, b1, w2, b2):
        h = torch.einsum("bsd,df->bsf", x, w1) + b1
        h = _gelu(h)
        return torch.einsum("bsf,fd->bsd", h, w2) + b2

    x = A_x
    xn = _layernorm(x, axis=-1)
    return x + _A_ref(xn, A_wqkv, A_wo) + _B_ref(xn, B_w1, B_b1, B_w2, B_b2)
```

```python
import sys, math, struct

NAME = "parallel_sum__sliding_block__dense_activation_gelu__prompt"

def f2u(x):
    return struct.unpack('<I', struct.pack('<f', x))[0]

class Asm:
    def __init__(self):
        self.lines = []
    def __call__(self, s):
        self.lines.append("  " + s)
    def label(self, l):
        self.lines.append(l + ":")
    def raw(self, s):
        self.lines.append(s)
    def text(self):
        out = []
        for l in self.lines:
            if out and l.rstrip().endswith(" lds") and " m0," in out[-1]:
                out.append("  s_nop 0")
            out.append(l)
        return "\n".join(out) + "\n"

WS_XN = 0
WS_Q = 4 << 20
WS_K = 8 << 20
WS_V = 12 << 20
WS_A2 = 16 << 20
A2_BLK = 144 * 2048
WS_END = WS_A2 + 64 * A2_BLK

def kernel_begin(a, name):
    a.raw(f".globl {name}")
    a.raw(".p2align 8")
    a.raw(f".type {name},@function")
    a.label(name)

def kd(name, vgpr, accum, sgpr=96):
    return f""".amdhsa_kernel {name}
  .amdhsa_next_free_vgpr {vgpr}
  .amdhsa_next_free_sgpr {sgpr}
  .amdhsa_accum_offset {accum}
  .amdhsa_group_segment_fixed_size 0
  .amdhsa_kernarg_size 88
  .amdhsa_user_sgpr_count 2
  .amdhsa_user_sgpr_kernarg_segment_ptr 1
  .amdhsa_system_sgpr_workgroup_id_x 1
.end_amdhsa_kernel
"""

def vr(b, n=1, p='v'):
    return f"{p}{b}" if n == 1 else f"{p}[{b}:{b+n-1}]"
def ar(b, n=1):
    return vr(b, n, 'a')
def sr(b, n=1):
    return vr(b, n, 's')

def gen_ln(a):
    kernel_begin(a, "ln_kernel")
    a("s_cmp_ge_u32 s2, 256")
    a("s_cbranch_scc1 L_ln_end")
    a("s_load_dwordx2 s[4:5], s[0:1], 0")
    a("s_load_dwordx2 s[8:9], s[0:1], 80")
    a("v_lshrrev_b32 v3, 5, v0")
    a("s_lshl_b32 s3, s2, 3")
    a("v_add_u32 v3, s3, v3")
    a("v_and_b32 v4, 31, v0")
    a("v_lshlrev_b32 v5, 11, v3")
    a("v_lshl_add_u32 v5, v4, 4, v5")
    a("s_mov_b32 s6, 0x400000")
    a("s_mov_b32 s7, 0x20000")
    a("s_mov_b32 s10, 0x400000")
    a("s_mov_b32 s11, 0x20000")
    a("s_waitcnt lgkmcnt(0)")
    for t in range(4):
        a(f"buffer_load_dwordx4 v[{8+4*t}:{11+4*t}], v5, s[4:7], 0 offen offset:{512*t}")
    a("v_lshrrev_b32 v6, 6, v3")
    a("v_lshlrev_b32 v6, 17, v6")
    a("v_lshrrev_b32 v7, 2, v4")
    a("v_lshl_add_u32 v6, v7, 12, v6")
    a("v_bfe_u32 v7, v3, 4, 2")
    a("v_lshl_add_u32 v6, v7, 10, v6")
    a("v_and_b32 v7, 3, v4")
    a("v_lshl_add_u32 v6, v7, 8, v6")
    a("v_and_b32 v7, 15, v3")
    a("v_lshl_add_u32 v6, v7, 4, v6")
    a("s_mov_b32 s12, 0xffff0000")
    a("s_mov_b32 s13, 0x8000")
    a("s_mov_b32 s14, 0x10000")
    a("s_mov_b32 s15, 0x18000")
    a("s_waitcnt vmcnt(0)")
    for i in range(16):
        a(f"v_lshlrev_b32 v{32+2*i}, 16, v{8+i}")
        a(f"v_and_b32 v{33+2*i}, s12, v{8+i}")
    a("v_pk_add_f32 v[64:65], v[32:33], v[34:35]")
    a("v_pk_add_f32 v[66:67], v[36:37], v[38:39]")
    for i in range(4, 16, 2):
        a(f"v_pk_add_f32 v[64:65], v[64:65], v[{32+2*i}:{33+2*i}]")
        a(f"v_pk_add_f32 v[66:67], v[66:67], v[{34+2*i}:{35+2*i}]")
    a("v_pk_add_f32 v[64:65], v[64:65], v[66:67]")
    a("v_add_f32 v64, v64, v65")
    def red32(r, t):
        for sh in (8, 4, 2, 1):
            a("s_nop 1")
            a(f"v_add_f32_dpp v{r}, v{r}, v{r} row_ror:{sh} row_mask:0xf bank_mask:0xf")
        a(f"ds_swizzle_b32 v{t}, v{r} offset:0x401F")
        a("s_waitcnt lgkmcnt(0)")
        a(f"v_add_f32 v{r}, v{r}, v{t}")
    red32(64, 65)
    a(f"v_mul_f32 v64, {hex(f2u(1.0/1024))}, v64")
    a("v_sub_f32 v66, 0, v64")
    a("v_mov_b32 v67, v66")
    a("v_pk_add_f32 v[68:69], v[32:33], v[66:67]")
    a("v_pk_mul_f32 v[70:71], v[68:69], v[68:69]")
    for i in range(1, 16):
        a(f"v_pk_add_f32 v[68:69], v[{32+2*i}:{33+2*i}], v[66:67]")
        a("v_pk_fma_f32 v[70:71], v[68:69], v[68:69], v[70:71]")
    a("v_add_f32 v70, v70, v71")
    red32(70, 71)
    a(f"v_mul_f32 v70, {hex(f2u(1.0/1024))}, v70")
    a("v_cvt_pk_bf16_f32 v72, v64, v70")
    a("v_lshlrev_b32 v66, 16, v72")
    a("v_and_b32 v70, s12, v72")
    a(f"v_add_f32 v70, {hex(f2u(1e-5))}, v70")
    a("v_cvt_pk_bf16_f32 v70, v70, v70")
    a("v_and_b32 v70, s12, v70")
    a("v_sqrt_f32 v70, v70")
    a("s_nop 0")
    a("v_cvt_pk_bf16_f32 v70, v70, v70")
    a("v_and_b32 v70, s12, v70")
    a("v_rcp_f32 v70, v70")
    a("v_sub_f32 v66, 0, v66")
    a("v_mov_b32 v67, v66")
    a("v_mov_b32 v71, v70")
    for i in range(16):
        a(f"v_pk_add_f32 v[68:69], v[{32+2*i}:{33+2*i}], v[66:67]")
        a("v_cvt_pk_bf16_f32 v72, v68, v69")
        a("v_lshlrev_b32 v68, 16, v72")
        a("v_and_b32 v69, s12, v72")
        a("v_pk_mul_f32 v[68:69], v[68:69], v[70:71]")
        a(f"v_cvt_pk_bf16_f32 v{8+i}, v68, v69")
    so = ["0", "s13", "s14", "s15"]
    for t in range(4):
        a(f"buffer_store_dwordx4 v[{8+4*t}:{11+4*t}], v6, s[8:11], {so[t]} offen")
    a.label("L_ln_end")
    a("s_endpgm")

G1_SLOT = 28672
def gen_gemm1(a):
    kernel_begin(a, "gemm1_kernel")
    ACC = 48
    def acc(f, mt): return ACC + (f * 4 + mt) * 4
    def areg(st, hh, mt): return (st & 3) * 32 + hh * 16 + mt * 4
    def breg(f): return 128 + f * 4
    sA, sWq, sW1, sWS, sB1 = 8, 12, 16, 20, 24
    sJ, sI, sW = 28, 29, 30
    sAoff, sWqoff, sW1off = 31, 32, 33
    sLq, sLw = 34, 35
    sCnt = 36
    vA0, vA1 = 1, 2
    vDq = [3, 4, 5]
    vDw = [6, 7, 8, 9]
    vBqE, vBqO, vBw = [10, 11], [12, 13], [14, 15]
    a("s_cmp_ge_u32 s2, 256")
    a("s_cbranch_scc1 L_g1_end")
    a("s_load_dwordx2 s[12:13], s[0:1], 8")
    a("s_load_dwordx2 s[16:17], s[0:1], 32")
    a("s_load_dwordx2 s[24:25], s[0:1], 40")
    a("s_load_dwordx2 s[20:21], s[0:1], 80")
    a("v_lshrrev_b32 v16, 6, v0")
    a("v_and_b32 v17, 63, v0")
    a("v_readfirstlane_b32 s30, v16")
    a("s_and_b32 s3, s2, 7")
    a("s_lshr_b32 s4, s2, 3")
    a("s_and_b32 s5, s4, 3")
    a("s_lshl_b32 s28, s3, 2")
    a("s_add_u32 s28, s28, s5")
    a("s_lshr_b32 s29, s4, 2")
    a(f"v_lshlrev_b32 v{vA0}, 4, v17")
    a(f"v_add_u32 v{vA1}, 0x1000, v{vA0}")
    a("v_and_b32 v18, 1, v17")
    a("v_lshrrev_b32 v19, 1, v17")
    a("s_movk_i32 s37, 43")
    a("s_movk_i32 s38, 6144")
    a("s_lshl_b32 s39, s28, 6")
    a("s_mul_i32 s40, s30, 16*6144")
    a("s_add_u32 s39, s39, s40")
    for t in range(3):
        a(f"v_add_u32 v20, {32*t}, v19")
        a("v_mul_u32_u24 v21, s37, v20")
        a("v_lshrrev_b32 v21, 8, v21")
        a("v_mul_u32_u24 v22, 6, v21")
        a("v_sub_u32 v22, v20, v22")
        a("v_bfe_u32 v23, v21, 3, 1")
        a("v_xor_b32 v22, v22, v23")
        a("v_mul_u32_u24 v24, s38, v21")
        a("v_lshrrev_b32 v23, 1, v22")
        a("v_lshl_add_u32 v24, v23, 11, v24")
        a("v_and_b32 v23, 1, v22")
        a("v_lshl_add_u32 v24, v23, 5, v24")
        a("v_lshl_add_u32 v24, v18, 4, v24")
        a(f"v_add_u32 v{vDq[t]}, s39, v24")
    a("s_movk_i32 s37, 37")
    a("s_movk_i32 s38, 7168")
    a("s_mul_i32 s39, s28, 224")
    a("s_mul_i32 s40, s30, 16*7168")
    a("s_add_u32 s39, s39, s40")
    a("s_and_b32 s41, s28, 1")
    a("v_mov_b32 v26, 0x40000000")
    for cls in range(2):
        a(f"v_subrev_u32 v20, {4*cls}, v19")
        a("v_cmp_gt_u32 vcc, 28, v20")
        a("v_mul_u32_u24 v21, s37, v20")
        a("v_lshrrev_b32 v21, 8, v21")
        a("v_mul_u32_u24 v22, 7, v21")
        a("v_sub_u32 v22, v20, v22")
        a("v_add_u32 v22, s41, v22")
        a("v_cmp_eq_u32 s[42:43], 7, v22")
        a("v_mul_u32_u24 v24, s38, v21")
        a("s_nop 0")
        a("v_cndmask_b32 v22, v22, 0, s[42:43]")
        a("v_lshl_add_u32 v24, v22, 5, v24")
        a("v_lshl_add_u32 v24, v18, 4, v24")
        a("v_add_u32 v24, s39, v24")
        for tt in range(2):
            t = cls * 2 + tt
            a(f"v_add_u32 v25, {4*t*7168}, v24")
            a(f"v_cndmask_b32 v{vDw[t]}, v26, v25, vcc")
    a("v_lshrrev_b32 v18, 4, v17")
    a("v_bfe_u32 v19, v17, 2, 2")
    a("v_and_b32 v20, 3, v17")
    a("v_and_b32 v21, 1, v18")
    a("v_lshrrev_b32 v22, 1, v18")
    a("v_mul_u32_u24 v23, 3072, v22")
    a("v_mul_u32_u24 v24, 1536, v21")
    a("v_add_u32 v23, v23, v24")
    a("v_mul_u32_u24 v24, 192, v19")
    a("v_add_u32 v23, v23, v24")
    a("v_lshl_add_u32 v23, v20, 3, v23")
    a("v_lshlrev_b32 v24, 5, v21")
    a(f"v_add_u32 v{vBqE[0]}, v23, v24")
    a(f"v_sub_u32 v{vBqO[0]}, v23, v24")
    a(f"v_add_u32 v{vBqE[1]}, {2*G1_SLOT}, v{vBqE[0]}")
    a(f"v_add_u32 v{vBqO[1]}, {2*G1_SLOT}, v{vBqO[0]}")
    a("v_lshlrev_b32 v23, 11, v18")
    a("v_mul_u32_u24 v24, 224, v19")
    a("v_add_u32 v23, v23, v24")
    a("v_lshl_add_u32 v23, v21, 7, v23")
    a(f"v_lshl_add_u32 v{vBw[0]}, v20, 3, v23")
    a(f"v_add_u32 v{vBw[1]}, {2*G1_SLOT}, v{vBw[0]}")
    a("v_lshlrev_b32 v27, 3, v18")
    a("s_mul_i32 s39, s28, 224")
    a("v_add_u32 v27, s39, v27")
    a("s_lshl_b32 s40, s41, 5")
    a("s_mul_i32 s44, s41, 192")
    a("s_sub_u32 s44, 192, s44")
    a("s_waitcnt lgkmcnt(0)")
    a("s_mov_b32 s14, 6291456")
    a("s_mov_b32 s15, 0x20000")
    a("s_mov_b32 s18, 7340032")
    a("s_mov_b32 s19, 0x20000")
    a("s_mov_b32 s26, 7168")
    a("s_mov_b32 s27, 0x20000")
    a(f"s_mov_b32 s22, {WS_END}")
    a("s_mov_b32 s23, 0x20000")
    a("s_lshl_b32 s3, s29, 2")
    a("s_add_u32 s3, s3, s30")
    a("s_lshl_b32 s3, s3, 17")
    a("s_add_u32 s8, s20, s3")
    a("s_addc_u32 s9, s21, 0")
    a("s_mov_b32 s10, 0x20000")
    a("s_mov_b32 s11, 0x20000")
    a("s_mul_i32 s34, s30, 3072")
    a("s_lshl_b32 s35, s30, 12")
    a("s_add_u32 s35, s35, 12288")
    for f in range(6):
        a(f"buffer_load_dwordx2 v[{28+2*f}:{29+2*f}], v27, s[24:27], s40 offen offset:{32*f}")
    a(f"buffer_load_dwordx2 v[40:41], v27, s[24:27], s44 offen")
    a("s_mov_b32 s31, 0")
    a("s_mov_b32 s32, 0")
    a("s_mov_b32 s33, 0")

    def dma_ops(slot):
        ops = []
        for t in range(3):
            ops.append([f"s_add_u32 m0, s{sLq}, {slot*G1_SLOT + t*1024}",
                        f"buffer_load_dwordx4 v{vDq[t]}, s[{sWq}:{sWq+3}], s{sWqoff} offen lds"])
        for t in range(4):
            ops.append([f"s_add_u32 m0, s{sLw}, {slot*G1_SLOT + t*1024}",
                        f"buffer_load_dwordx4 v{vDw[t]}, s[{sW1}:{sW1+3}], s{sW1off} offen lds"])
        return ops
    def a_ops(st, hh):
        v = vA1 if hh else vA0
        return [f"buffer_load_dwordx4 {ar(areg(st, hh, mt), 4)}, v{v}, s[{sA}:{sA+3}], s{sAoff} offen offset:{1024*mt}"
                for mt in range(4)]
    def rd_ops(slot, hh, f):
        hi = slot >> 1
        base = (slot & 1) * G1_SLOT
        out = []
        for rd in range(2):
            if f < 6:
                v = (vBqO if f & 1 else vBqE)[hi]
                off = base + hh * 6144 + rd * 768 + f * 32
            else:
                v = vBw[hi]
                off = base + 12288 + hh * 8192 + rd * 1024 + (f - 6) * 32
            out.append(f"ds_read_b64_tr_b16 {ar(breg(f) + 2*rd, 2)}, v{v} offset:{off}")
        return out
    def mfma(st, hh, f, mt):
        c = vr(acc(f, mt), 4)
        A = ar(areg(st, hh, mt), 4)
        B = ar(breg(f), 4)
        if f in (4, 5):
            return f"v_mfma_f32_16x16x32_bf16 {c}, {A}, {B}, {c}"
        return f"v_mfma_f32_16x16x32_bf16 {c}, {B}, {A}, {c}"

    for st in range(4):
        for m0op, ld in dma_ops(st):
            a(m0op); a("s_nop 0"); a(ld)
        a(f"s_add_u32 s{sWqoff}, s{sWqoff}, {64*6144}")
        a(f"s_add_u32 s{sW1off}, s{sW1off}, {64*7168}")
        for op in a_ops(st, 0): a(op)
        if st < 3:
            for op in a_ops(st, 1): a(op)
            a(f"s_add_u32 s{sAoff}, s{sAoff}, 8192")
    for f in range(6):
        for r in range(16):
            a(f"v_mov_b32 v{acc(f,0)+r}, 0")
    a("s_mov_b32 s45, 0xffff0000")
    a("s_waitcnt vmcnt(56)")
    for f in range(7):
        b = acc(6 + f, 0)
        a(f"v_lshlrev_b32 v{b}, 16, v{28+2*f}")
        a(f"v_and_b32 v{b+1}, s45, v{28+2*f}")
        a(f"v_lshlrev_b32 v{b+2}, 16, v{29+2*f}")
        a(f"v_and_b32 v{b+3}, s45, v{29+2*f}")
        for r in range(4, 16):
            a(f"v_mov_b32 v{b+r}, v{b+(r&3)}")
    a("s_waitcnt vmcnt(41)")
    a("s_barrier")
    for f in range(13):
        for op in rd_ops(0, 0, f): a(op)
    a(f"s_mov_b32 s{sCnt}, 4")
    a("s_waitcnt lgkmcnt(0)")
    a.label("L_g1_loop")
    for t in range(8):
        st, hh = t >> 1, t & 1
        nst, nhh = ((t + 1) >> 1) & 3, (t + 1) & 1
        extra = [[] for _ in range(13)]
        if hh == 0:
            ops = a_ops(st + 3, 1)
            for k, op in enumerate(ops):
                extra[1 + 3*k].append(op)
            extra[11].append(f"s_add_u32 s{sAoff}, s{sAoff}, 8192")
        else:
            d = dma_ops(st)
            for k, (m0op, ld) in enumerate(d):
                extra[2 + k] += [m0op, ld]
            for k, op in enumerate(a_ops(st, 0)):
                extra[9 + k].append(op)
            extra[10].append(f"s_add_u32 s{sWqoff}, s{sWqoff}, {64*6144}")
            extra[11].append(f"s_add_u32 s{sW1off}, s{sW1off}, {64*7168}")
        pend = []
        for f in range(13):
            if f == 0:
                a("s_waitcnt lgkmcnt(4)")
            if f == 7 and hh == 0:
                a("s_waitcnt lgkmcnt(4)")
            if hh == 1 and f == 2:
                a("s_waitcnt vmcnt(30) lgkmcnt(0)")
                a("s_barrier")
            fill = []
            if not (hh == 1 and f < 2 + 1):
                fill += pend; pend = []
            elif hh == 1 and f == 2:
                fill += pend; pend = []
            fill += extra[f]
            n = len(fill)
            for mt in range(4):
                a(mfma(st, hh, f, mt))
                lo, hi = (n * mt + 3) // 4, (n * (mt + 1) + 3) // 4
                for op in fill[lo:hi]: a(op)
            pend += rd_ops(nst, nhh, f)
        if t == 7:
            a(f"s_sub_u32 s{sCnt}, s{sCnt}, 1")
            a(f"s_cmp_lg_u32 s{sCnt}, 0")
        for op in pend: a(op)
    a("s_cbranch_scc1 L_g1_loop")
    a("s_lshl_b32 s3, s28, 7")
    a("s_lshl_b32 s4, s29, 4")
    a("s_add_u32 s3, s3, s4")
    a("s_lshl_b32 s4, s30, 2")
    a("s_add_u32 s3, s3, s4")
    a("s_lshl_b32 s3, s3, 10")
    a(f"s_add_u32 s46, s3, {WS_Q}")
    a(f"s_add_u32 s47, s3, {WS_K}")
    a(f"s_add_u32 s48, s3, {WS_V}")
    a("s_lshl_b32 s3, s29, 3")
    a("s_lshl_b32 s4, s30, 1")
    a("s_add_u32 s3, s3, s4")
    a(f"s_mul_i32 s3, s3, {A2_BLK}")
    a(f"s_add_u32 s3, s3, {WS_A2}")
    a("s_lshr_b32 s4, s28, 1")
    a("s_mul_i32 s4, s4, 7*2048")
    a("s_add_u32 s3, s3, s4")
    a("s_lshl_b32 s4, s41, 13")
    a("s_add_u32 s50, s3, s4")
    a("s_lshl_b32 s4, s41, 3")
    a("s_add_u32 s4, s4, 3*2048")
    a("s_add_u32 s56, s3, s4")
    a(f"s_add_u32 s57, s56, {A2_BLK}")
    a("s_add_u32 s51, s50, 2048")
    a("s_add_u32 s52, s50, 4096")
    a(f"s_add_u32 s53, s50, {A2_BLK}")
    a(f"s_add_u32 s54, s51, {A2_BLK}")
    a(f"s_add_u32 s55, s52, {A2_BLK}")
    a("s_waitcnt vmcnt(0) lgkmcnt(0)")
    T = 16
    tcur = [0]
    def tmp4():
        r = T + 4 * (tcur[0] % 4); tcur[0] += 1
        return r
    for (f0, so) in ((0, 46), (2, 47)):
        for mt in range(4):
            r = tmp4()
            for h in range(2):
                b = acc(f0 + h, mt)
                a(f"v_cvt_pk_bf16_f32 v{r+2*h}, v{b}, v{b+1}")
                a(f"v_cvt_pk_bf16_f32 v{r+2*h+1}, v{b+2}, v{b+3}")
            a(f"buffer_store_dwordx4 {vr(r,4)}, v{vA0}, s[{sWS}:{sWS+3}], s{so} offen offset:{1024*mt}")
    for pp in range(2):
        for dh in range(2):
            r = tmp4()
            for h in range(2):
                b = acc(4 + dh, 2*pp + h)
                a(f"v_cvt_pk_bf16_f32 v{r+2*h}, v{b}, v{b+1}")
                a(f"v_cvt_pk_bf16_f32 v{r+2*h+1}, v{b+2}, v{b+3}")
            a(f"buffer_store_dwordx4 {vr(r,4)}, v{vA0}, s[{sWS}:{sWS+3}], s48 offen offset:{1024*(2*pp+dh)}")
    c0 = -2.0 * math.sqrt(2.0 / math.pi) * math.log2(math.e)
    c1 = c0 * 0.044715
    a(f"v_mov_b32 v32, {hex(f2u(c0))}")
    a(f"v_mov_b32 v33, {hex(f2u(c0))}")
    a(f"v_mov_b32 v34, {hex(f2u(c1))}")
    a(f"v_mov_b32 v35, {hex(f2u(c1))}")
    a("v_mov_b32 v36, 1.0")
    a("v_mov_b32 v37, 1.0")
    def gelu4(b, dst):
        a(f"v_pk_mul_f32 v[40:41], v[{b}:{b+1}], v[{b}:{b+1}]")
        a(f"v_pk_mul_f32 v[42:43], v[{b+2}:{b+3}], v[{b+2}:{b+3}]")
        a("v_pk_fma_f32 v[40:41], v[40:41], v[34:35], v[32:33]")
        a("v_pk_fma_f32 v[42:43], v[42:43], v[34:35], v[32:33]")
        a(f"v_pk_mul_f32 v[40:41], v[40:41], v[{b}:{b+1}]")
        a(f"v_pk_mul_f32 v[42:43], v[42:43], v[{b+2}:{b+3}]")
        for k in range(4): a(f"v_exp_f32 v{40+k}, v{40+k}")
        a("s_nop 0")
        a("v_pk_add_f32 v[40:41], v[40:41], v[36:37]")
        a("v_pk_add_f32 v[42:43], v[42:43], v[36:37]")
        for k in range(4): a(f"v_rcp_f32 v{40+k}, v{40+k}")
        a("s_nop 0")
        a(f"v_pk_mul_f32 v[40:41], v[40:41], v[{b}:{b+1}]")
        a(f"v_pk_mul_f32 v[42:43], v[42:43], v[{b+2}:{b+3}]")
        a(f"v_cvt_pk_bf16_f32 v{dst}, v40, v41")
        a(f"v_cvt_pk_bf16_f32 v{dst+1}, v42, v43")
    for pr in range(3):
        for mt in range(4):
            r = tmp4()
            gelu4(acc(6 + 2*pr, mt), r)
            gelu4(acc(7 + 2*pr, mt), r + 2)
            so = 50 + pr + 3 * (mt >> 1)
            a(f"buffer_store_dwordx4 {vr(r,4)}, v{vA0}, s[{sWS}:{sWS+3}], s{so} offen offset:{1024*(mt&1)}")
    for mt in range(4):
        r = tmp4()
        gelu4(acc(12, mt), r)
        a(f"buffer_store_dwordx2 {vr(r,2)}, v{vA0}, s[{sWS}:{sWS+3}], s{56 + (mt>>1)} offen offset:{1024*(mt&1)}")
    a.label("L_g1_end")
    a("s_endpgm")

def gen_attn(a):
    kernel_begin(a, "attn_kernel")
    def kreg(kk): return kk * 4
    def vreg(idx): return 80 + idx * 4
    def qreg(i): return 160 + i * 4
    S = 64
    P = 132
    O = 168
    MK = 24
    ONES = 48
    a("s_cmp_ge_u32 s2, 256")
    a("s_cbranch_scc1 L_at_end")
    a("s_load_dwordx2 s[20:21], s[0:1], 80")
    a("v_lshrrev_b32 v16, 6, v0")
    a("v_and_b32 v17, 63, v0")
    a("v_readfirstlane_b32 s30, v16")
    a("s_and_b32 s3, s2, 7")
    a("s_lshr_b32 s4, s2, 3")
    a("s_and_b32 s5, s4, 3")
    a("s_lshl_b32 s28, s3, 2")
    a("s_add_u32 s28, s28, s5")
    a("s_lshr_b32 s29, s4, 2")
    a("s_lshl_b32 s31, s29, 2")
    a("s_add_u32 s31, s31, s30")
    a("v_lshlrev_b32 v1, 4, v17")
    for kq in range(5):
        a(f"s_add_i32 s{40+kq}, s31, {kq-4}")
        a(f"s_cmp_lt_i32 s{40+kq}, 0")
        a(f"s_cselect_b32 s{48+kq}, 1, 0")
        a(f"s_lshl_b32 s{40+kq}, s{40+kq}, 12")
        a(f"s_cmp_eq_u32 s{48+kq}, 1")
        a(f"s_cselect_b32 s{40+kq}, 0x40000000, s{40+kq}")
    a("s_lshl_b32 s3, s28, 17")
    a("s_waitcnt lgkmcnt(0)")
    for (r, base) in ((8, WS_Q), (12, WS_K), (16, WS_V)):
        a(f"s_add_u32 s4, s3, {base}")
        a(f"s_add_u32 s{r}, s20, s4")
        a(f"s_addc_u32 s{r+1}, s21, 0")
        a(f"s_mov_b32 s{r+2}, 0x20000")
        a(f"s_mov_b32 s{r+3}, 0x20000")
    a(f"s_mov_b32 s22, {WS_END}")
    a("s_mov_b32 s23, 0x20000")
    for i in range(4):
        a(f"buffer_load_dwordx4 {ar(qreg(i),4)}, v1, s[8:11], s44 offen offset:{1024*i}")
    for kk in range(20):
        a(f"buffer_load_dwordx4 {ar(kreg(kk),4)}, v1, s[12:15], s{40+kk//4} offen offset:{1024*(kk&3)}")
    for kk in range(20):
        a(f"buffer_load_dwordx4 {ar(vreg(kk),4)}, v1, s[16:19], s{40+kk//4} offen offset:{1024*(kk&3)}")
    NEG = hex(f2u(-1e30))
    a(f"v_mov_b32 v2, {NEG}")
    for kq in range(4):
        a(f"s_cmp_eq_u32 s{48+kq}, 1")
        a(f"s_cselect_b32 s5, {NEG}, 0")
        for r in range(4):
            a(f"v_mov_b32 v{MK+4*kq+r}, s5")
    a("v_and_b32 v3, 15, v17")
    a("v_lshrrev_b32 v4, 4, v17")
    a("v_lshlrev_b32 v4, 2, v4")
    for r in range(4):
        a(f"v_add_u32 v5, {r}, v4")
        a("v_cmp_gt_u32 vcc, v5, v3")
        a("s_nop 1")
        a(f"v_cndmask_b32 v{MK+16+r}, v2, v{MK+r}, vcc")
        a(f"v_cndmask_b32 v{MK+20+r}, 0, v2, vcc")
    for r in range(4):
        a(f"v_mov_b32 v{ONES+r}, 0x3f803f80")
    cs = (32 ** -0.5) * math.log2(math.e)
    a(f"s_mov_b32 s56, {hex(f2u(cs))}")
    a(f"s_mov_b32 s57, {hex(f2u(cs))}")
    a(f"s_mul_i32 s58, s31, {2*A2_BLK}")
    a("s_add_u32 s4, s28, 112")
    a("s_lshl_b32 s4, s4, 11")
    a("s_add_u32 s58, s58, s4")
    a(f"s_add_u32 s58, s58, {WS_A2}")
    a(f"s_add_u32 s59, s58, {A2_BLK}")
    for i in range(4):
        if i == 0:
            a("s_waitcnt vmcnt(23)")
        elif i == 1:
            pass
        for n in range(17):
            kk = i + n
            if i > 0 and n == 16:
                a(f"s_waitcnt vmcnt({23 - i})") if False else None
            if n == 0: c = vr(MK + 16, 4)
            elif n == 16: c = vr(MK + 20, 4)
            elif kk < 16: c = vr(MK + 4 * (kk // 4), 4)
            else: c = "0"
            a(f"v_mfma_f32_16x16x32_bf16 {vr(S+4*n,4)}, {ar(kreg(kk),4)}, {ar(qreg(i),4)}, {c}")
        a("s_nop 7")
        a(f"v_max3_f32 v6, v{S}, v{S+1}, v{S+2}")
        a(f"v_max3_f32 v7, v{S+3}, v{S+4}, v{S+5}")
        k = 6
        tog = 0
        while k + 1 < 68:
            a(f"v_max3_f32 v{6+tog}, v{6+tog}, v{S+k}, v{S+k+1}")
            k += 2; tog ^= 1
        a("v_max_f32 v6, v6, v7")
        a("v_mov_b32 v7, v6")
        a("s_nop 1")
        a("v_permlane32_swap_b32 v7, v6")
        a("s_nop 1")
        a("v_max_f32 v6, v6, v7")
        a("ds_swizzle_b32 v7, v6 offset:0x401F")
        a("s_waitcnt lgkmcnt(0)")
        a("v_max_f32 v6, v6, v7")
        a("v_mul_f32 v8, s56, v6")
        a("v_sub_f32 v8, 0, v8")
        a("v_mov_b32 v9, v8")
        for n in range(34):
            a(f"v_pk_fma_f32 v[{S+2*n}:{S+2*n+1}], v[{S+2*n}:{S+2*n+1}], s[56:57], v[8:9]")
        for n in range(68):
            a(f"v_exp_f32 v{S+n}, v{S+n}")
        off = i & 1
        z = 0 if off else 17
        a(f"v_mov_b32 v{P+2*z}, 0")
        a(f"v_mov_b32 v{P+2*z+1}, 0")
        for n in range(17):
            pos = off + n
            a(f"v_cvt_pk_bf16_f32 v{P+2*pos}, v{S+4*n}, v{S+4*n+1}")
            a(f"v_cvt_pk_bf16_f32 v{P+2*pos+1}, v{S+4*n+2}, v{S+4*n+3}")
        if i == 0:
            a("s_waitcnt vmcnt(0)")
        a("s_nop 1")
        g0 = i // 2
        for gi in range(9):
            for dh in range(3):
                A = ar(vreg(2 * (g0 + gi) + dh), 4) if dh < 2 else vr(ONES, 4)
                c = vr(O + 4*dh, 4)
                a(f"v_mfma_f32_16x16x32_bf16 {c}, {A}, {vr(P+4*gi,4)}, {'0' if gi == 0 else c}")
        a("s_nop 7")
        a(f"v_rcp_f32 v10, v{O+8}")
        a("s_nop 0")
        for r in range(8):
            a(f"v_mul_f32 v{O+r}, v{O+r}, v10")
        d = 52 + 4 * (i & 1)
        for r in range(4):
            a(f"v_cvt_pk_bf16_f32 v{d+r}, v{O+2*r}, v{O+2*r+1}")
        a(f"buffer_store_dwordx4 {vr(d,4)}, v1, s[20:23], s{58 + (i>>1)} offen offset:{1024*(i&1)}")
    a.label("L_at_end")
    a("s_endpgm")

G2_NS = 4
G2_SLOT = 16384
def gen_gemm2(a):
    kernel_begin(a, "gemm2_kernel")
    NS = G2_NS
    ACC = 64
    def acc(f, mt): return ACC + (f * 2 + mt) * 4
    def areg(st, ks, mt): return (st % NS) * 32 + ks * 8 + mt * 4
    NB = 2
    def breg(t, f): return 96 + (t % NB) * 16 + f * 4
    sA, sW, sX, sO, sB2 = 8, 12, 16, 20, 24
    sAoff, sWoff, sL, sCnt, sSt = 31, 32, 34, 36, 37
    vA = [1, 2]
    vD = [3, 4, 5, 6]
    vB = [7, 8, 9, 10]
    a("s_cmp_ge_u32 s2, 256")
    a("s_cbranch_scc1 L_g2_end")
    a("s_load_dwordx2 s[12:13], s[0:1], 48")
    a("s_load_dwordx2 s[40:41], s[0:1], 16")
    a("s_load_dwordx2 s[16:17], s[0:1], 0")
    a("s_load_dwordx2 s[20:21], s[0:1], 64")
    a("s_load_dwordx2 s[24:25], s[0:1], 56")
    a("s_load_dwordx2 s[42:43], s[0:1], 80")
    a("v_lshrrev_b32 v16, 6, v0")
    a("v_and_b32 v17, 63, v0")
    a("v_readfirstlane_b32 s30, v16")
    a("s_and_b32 s3, s2, 7")
    a("s_lshr_b32 s4, s2, 3")
    a("s_lshr_b32 s5, s3, 1")
    a("s_lshl_b32 s28, s5, 2")
    a("s_lshr_b32 s5, s4, 3")
    a("s_add_u32 s28, s28, s5")
    a("s_and_b32 s5, s3, 1")
    a("s_lshl_b32 s29, s5, 3")
    a("s_and_b32 s5, s4, 7")
    a("s_add_u32 s29, s29, s5")
    a(f"v_lshlrev_b32 v{vA[0]}, 4, v17")
    a(f"v_add_u32 v{vA[1]}, 0x1000, v{vA[0]}")
    a("v_lshrrev_b32 v18, 3, v17")
    a("v_bfe_u32 v19, v17, 1, 2")
    a("v_lshrrev_b32 v20, 1, v18")
    a("v_xor_b32 v19, v19, v20")
    a("v_and_b32 v20, 1, v17")
    a("v_lshlrev_b32 v21, 11, v18")
    a("v_lshl_add_u32 v21, v19, 5, v21")
    a("v_lshl_add_u32 v21, v20, 4, v21")
    a("s_lshl_b32 s3, s30, 16")
    a("s_lshl_b32 s4, s29, 7")
    a("s_add_u32 s3, s3, s4")
    a(f"v_add_u32 v{vD[0]}, s3, v21")
    for t in range(1, 4):
        a(f"v_add_u32 v{vD[t]}, {t*8*2048}, v{vD[0]}")
    a("v_lshrrev_b32 v18, 2, v17")
    a("v_bfe_u32 v19, v17, 3, 2")
    a("v_and_b32 v20, 3, v17")
    a("v_lshlrev_b32 v21, 7, v18")
    a("v_lshl_add_u32 v21, v20, 3, v21")
    for f in range(4):
        a(f"v_xor_b32 v22, {f}, v19")
        a(f"v_lshl_add_u32 v{vB[f]}, v22, 5, v21")
    a("v_and_b32 v18, 15, v17")
    a("v_lshrrev_b32 v19, 4, v17")
    a("v_lshlrev_b32 v11, 11, v18")
    a("v_lshl_add_u32 v11, v19, 3, v11")
    a("s_lshl_b32 s3, s28, 18")
    a("s_lshl_b32 s4, s30, 16")
    a("s_add_u32 s3, s3, s4")
    a("s_lshl_b32 s4, s29, 7")
    a("s_add_u32 s44, s3, s4")
    a("s_add_u32 s45, s44, 0x8000")
    a("v_lshlrev_b32 v12, 3, v19")
    a("v_lshlrev_b32 v13, 11, v18")
    a("v_and_b32 v20, 1, v19")
    a("v_lshl_add_u32 v13, v20, 5, v13")
    a("v_lshrrev_b32 v20, 1, v19")
    a("v_lshl_add_u32 v13, v20, 4, v13")
    a("s_waitcnt lgkmcnt(0)")
    a(f"s_mov_b32 s14, {3584*2048}")
    a("s_mov_b32 s15, 0x20000")
    a("s_mov_b32 s18, 0x400000")
    a("s_mov_b32 s19, 0x20000")
    a("s_mov_b32 s22, 0x400000")
    a("s_mov_b32 s23, 0x20000")
    a("s_mov_b32 s26, 2048")
    a("s_mov_b32 s27, 0x20000")
    a("s_lshl_b32 s3, s28, 2")
    a("s_add_u32 s3, s3, s30")
    a(f"s_mul_i32 s3, s3, {A2_BLK}")
    a(f"s_add_u32 s3, s3, {WS_A2}")
    a("s_add_u32 s8, s42, s3")
    a("s_addc_u32 s9, s43, 0")
    a(f"s_mov_b32 s10, {A2_BLK}")
    a("s_mov_b32 s11, 0x20000")
    a(f"s_lshl_b32 s{sL}, s30, 12")
    a(f"s_mov_b32 s{sAoff}, 0")
    a(f"s_mov_b32 s{sWoff}, 0")
    a(f"s_mov_b32 s{sSt}, 0")
    for f in range(4):
        for mt in range(2):
            r = 32 + (f * 2 + mt) * 2
            a(f"buffer_load_dwordx2 v[{r}:{r+1}], v11, s[16:19], s{44+mt} offen offset:{32*f}")
    for f in range(4):
        a(f"buffer_load_dwordx2 v[{48+2*f}:{49+2*f}], v12, s[24:27], s4 offen offset:{32*f}")

    def dma_ops(slot):
        return [[f"s_add_u32 m0, s{sL}, {slot*G2_SLOT + t*1024}",
                 f"buffer_load_dwordx4 v{vD[t]}, s[{sW}:{sW+3}], s{sWoff} offen lds"] for t in range(4)]
    def w_adv():
        return [f"s_add_u32 s{sWoff}, s{sWoff}, {128*2048}",
                f"s_add_u32 s{sSt}, s{sSt}, 1",
                f"s_cmp_eq_u32 s{sSt}, 28",
                f"s_cselect_b32 s{sW}, s40, s{sW}",
                f"s_cselect_b32 s{sW+1}, s41, s{sW+1}",
                f"s_cselect_b32 s{sW+2}, 0x200000, s{sW+2}",
                f"s_cselect_b32 s{sWoff}, 0, s{sWoff}"]
    def a_op(st, ks, mt):
        return (f"buffer_load_dwordx4 {ar(areg(st, ks, mt), 4)}, v{vA[ks>>1]}, s[{sA}:{sA+3}], s{sAoff} "
                f"offen offset:{(ks&1)*2048 + mt*1024}")
    def rd_ops(t, f):
        st, ks = (t >> 2) % NS, t & 3
        return [f"ds_read_b64_tr_b16 {vr(breg(t, f) + 2*rd, 2)}, v{vB[f]} offset:{st*G2_SLOT + ks*4096 + rd*2048}"
                for rd in range(2)]
    for st in range(NS):
        for m0op, ld in dma_ops(st):
            a(m0op); a("s_nop 0"); a(ld)
        for op in w_adv(): a(op)
        for ks in range(4):
            if st == NS - 1 and ks == 3: continue
            for mt in range(2): a(a_op(st, ks, mt))
        if st < NS - 1:
            a(f"s_add_u32 s{sAoff}, s{sAoff}, 8192")
    tot = NS * 12 - 2
    a("s_mov_b32 s46, 0xffff0000")
    a(f"s_waitcnt vmcnt({tot})")
    for f in range(4):
        a(f"v_lshlrev_b32 v56, 16, v{48+2*f}")
        a(f"v_and_b32 v57, s46, v{48+2*f}")
        a(f"v_lshlrev_b32 v58, 16, v{49+2*f}")
        a(f"v_and_b32 v59, s46, v{49+2*f}")
        for mt in range(2):
            r = 32 + (f * 2 + mt) * 2
            b = acc(f, mt)
            a(f"v_lshlrev_b32 v{b}, 16, v{r}")
            a(f"v_and_b32 v{b+1}, s46, v{r}")
            a(f"v_lshlrev_b32 v{b+2}, 16, v{r+1}")
            a(f"v_and_b32 v{b+3}, s46, v{r+1}")
            for k in range(4):
                a(f"v_add_f32 v{b+k}, v{b+k}, v{56+k}")
    a(f"s_waitcnt vmcnt({tot - 12})")
    a("s_barrier")
    for f in range(4):
        for op in rd_ops(0, f): a(op)
    a(f"s_mov_b32 s{sCnt}, {36 // NS}")
    a.label("L_g2_loop")
    for t in range(4 * NS):
        st, ks = t >> 2, t & 3
        fill = []
        if ks == 3:
            a(f"s_waitcnt vmcnt({12*(NS-2) + 4}) lgkmcnt(0)")
            a("s_barrier")
            for f in range(4): fill += rd_ops(t + 1, f)
            for m0op, ld in dma_ops(st): fill += [m0op, ld]
            fill += w_adv()
            fill += [a_op(st, 2, 0), a_op(st, 2, 1)]
        else:
            for f in range(4):
                for op in rd_ops(t + 1, f): a(op)
            a("s_waitcnt lgkmcnt(8)")
            if ks == 0:
                fill += [a_op(st - 1 + NS, 3, 0), a_op(st - 1 + NS, 3, 1), f"s_add_u32 s{sAoff}, s{sAoff}, 8192"]
            else:
                fill += [a_op(st, ks - 1, 0), a_op(st, ks - 1, 1)]
        n = len(fill)
        for k in range(8):
            f, mt = k >> 1, k & 1
            c = vr(acc(f, mt), 4)
            a(f"v_mfma_f32_16x16x32_bf16 {c}, {vr(breg(t, f), 4)}, {ar(areg(st, ks, mt), 4)}, {c}")
            lo, hi = (n * k + 7) // 8, (n * (k + 1) + 7) // 8
            for op in fill[lo:hi]: a(op)
    a(f"s_sub_u32 s{sCnt}, s{sCnt}, 1")
    a(f"s_cmp_lg_u32 s{sCnt}, 0")
    a("s_cbranch_scc1 L_g2_loop")
    a("s_nop 7")
    for mt in range(2):
        for fp in range(2):
            r = 32 + (mt * 2 + fp) * 4
            for h in range(2):
                b = acc(2 * fp + h, mt)
                a(f"v_cvt_pk_bf16_f32 v{r+2*h}, v{b}, v{b+1}")
                a(f"v_cvt_pk_bf16_f32 v{r+2*h+1}, v{b+2}, v{b+3}")
            a("s_nop 1")
            a(f"v_permlane16_swap_b32 v{r}, v{r+2}")
            a(f"v_permlane16_swap_b32 v{r+1}, v{r+3}")
            a(f"buffer_store_dwordx4 {vr(r,4)}, v13, s[20:23], s{44+mt} offen offset:{64*fp}")
    a.label("L_g2_end")
    a("s_endpgm")

def main():
    a = Asm()
    a.raw("; @launch kernel=ln_kernel grid=(256,1,1) block=(256,1,1) lds=0")
    a.raw(f"; @launch kernel=gemm1_kernel grid=(256,1,1) block=(256,1,1) lds={4*G1_SLOT}")
    a.raw("; @launch kernel=attn_kernel grid=(256,1,1) block=(256,1,1) lds=0")
    a.raw(f"; @launch kernel=gemm2_kernel grid=(256,1,1) block=(256,1,1) lds={G2_NS*G2_SLOT}")
    a.raw('.amdgcn_target "amdgcn-amd-amdhsa--gfx950"')
    a.raw(".text")
    gen_ln(a)
    gen_gemm1(a)
    gen_attn(a)
    gen_gemm2(a)
    a.raw('.section .rodata,"a"')
    a.raw(".p2align 6")
    a.raw(kd("ln_kernel", 80, 80))
    a.raw(".p2align 6")
    a.raw(kd("gemm1_kernel", 256 + 180, 256))
    a.raw(".p2align 6")
    a.raw(kd("attn_kernel", 180 + 176, 180))
    a.raw(".p2align 6")
    a.raw(kd("gemm2_kernel", 128 + G2_NS * 32, 128))
    out = sys.argv[1] if len(sys.argv) > 1 else f"cdna_kernels/{NAME}.s"
    open(out, "w").write(a.text())

if __name__ == "__main__":
    main()
```
